```python
import torch

def _softmax(x, axis=-1):
    return torch.softmax(x, dim=axis)
def _gelu(x):
    return torch.nn.functional.gelu(x, approximate="tanh")
def _silu(x):
    return torch.nn.functional.silu(x)
def _sigmoid(x):
    return torch.sigmoid(x)
def _layernorm(x, axis=-1, eps=1e-5):
    m = x.mean(dim=axis, keepdim=True)
    v = x.var(dim=axis, keepdim=True, unbiased=False)
    return (x - m) / torch.sqrt(v + eps)
def _scatter_add(tgt, idx, src, axis=0):
    return tgt.clone().index_add_(axis, idx, src)
def _segment_sum(src, seg, n):
    out = torch.zeros((n,) + src.shape[1:], dtype=src.dtype)
    return out.index_add_(0, seg, src)
def _pad(x, pw):
    flat = tuple(v for pair in reversed(pw) for v in pair)
    return torch.nn.functional.pad(x, flat)

kernel_name = 'recurrent_scan__compressed_kv_cla__dense_activation_squared_relu__decode'

def setup_inputs():

    _w = (lambda a: (lambda t: t.to(torch.bfloat16) if t.is_floating_point() else t)(torch.as_tensor(a)))
    def _A_setup():
        B, H, Sq, Sk, D, M = 1, 32, 1, 4096, 128, 640
        Dc = 4 * D
        return {
            "x": _w((lambda *s: torch.randn(*s, dtype=torch.bfloat16) * 0.05)(B, Sq, M)),
            "c_kv": _w((lambda *s: torch.randn(*s, dtype=torch.bfloat16) * 0.2)(B, Sk, Dc)),
            "w_q": _w((lambda *s: torch.randn(*s, dtype=torch.bfloat16) * 3.2)(M, H, D) * (M ** -0.5)),
            "w_uk": _w((lambda *s: torch.randn(*s, dtype=torch.bfloat16) * 3.2)(Dc, H, D) * (Dc ** -0.5)),
            "w_uv": _w((lambda *s: torch.randn(*s, dtype=torch.bfloat16) * 0.2)(Dc, H, D) * (Dc ** -0.5)),
            "w_o": _w((lambda *s: torch.randn(*s, dtype=torch.bfloat16) * 0.2)(H, D, M) * ((H * D) ** -0.5)),
        }
    _A_in = _A_setup()

    def _B_setup():
        B, S, D, F = 1, 1, 640, 1728
        return {
            "x": _w((lambda *s: torch.randn(*s, dtype=torch.bfloat16) * 0.05)(B, S, D)),
            "w1": _w((lambda *s: torch.randn(*s, dtype=torch.bfloat16) * 0.1)(D, F)),
            "b1": _w((lambda *s: torch.randn(*s, dtype=torch.bfloat16) * 0.8)(F)),
            "w2": _w((lambda *s: torch.randn(*s, dtype=torch.bfloat16) * 0.1)(F, D)),
            "b2": _w((lambda *s: torch.randn(*s, dtype=torch.bfloat16) * 12.8)(D)),
        }
    _B_in = _B_setup()

    return {
        "A_x": _A_in["x"],
        "A_c_kv": _A_in["c_kv"],
        "A_w_q": _A_in["w_q"],
        "A_w_uk": _A_in["w_uk"],
        "A_w_uv": _A_in["w_uv"],
        "A_w_o": _A_in["w_o"],
        "B_x": _B_in["x"],
        "B_w1": _B_in["w1"],
        "B_b1": _B_in["b1"],
        "B_w2": _B_in["w2"],
        "B_b2": _B_in["b2"],
    }

def reference(A_x, A_c_kv, A_w_q, A_w_uk, A_w_uv, A_w_o, B_x, B_w1, B_b1, B_w2, B_b2):
    def _A_ref(x, c_kv, w_q, w_uk, w_uv, w_o):
        B, Sq, M = x.shape[0], x.shape[1], x.shape[2]
        Sk = c_kv.shape[1]
        H, D = w_q.shape[1], w_q.shape[2]
        q = torch.einsum("bqm,mhd->bhqd", x, w_q)
        k = torch.einsum("bkc,chd->bhkd", c_kv, w_uk)
        v = torch.einsum("bkc,chd->bhkd", c_kv, w_uv)
        scores = torch.einsum("bhqd,bhkd->bhqk", q, k) * (D ** -0.5)
        off = Sk - Sq
        qi = torch.arange(Sq)[:, None]
        kj = torch.arange(Sk)[None, :]
        cmask = kj <= (qi + off)
        scores = torch.where(cmask[None, None], scores, -1e9)
        p = _softmax(scores, axis=-1)
        ctx = torch.einsum("bhqk,bhkd->bhqd", p, v)
        return torch.einsum("bhqd,hdm->bqm", ctx, w_o)

    def _B_ref(x, w1, b1, w2, b2):
        h = torch.einsum("bsd,df->bsf", x, w1) + b1
        zero = torch.zeros_like(h)
        r = torch.where(h > zero, h, zero)
        h = r * r
        out = torch.einsum("bsf,fd->bsd", h, w2) + b2
        return out

    x = A_x
    xn = _layernorm(x, axis=-1)
    s = _A_ref(xn, A_c_kv, A_w_q, A_w_uk, A_w_uv, A_w_o)
    g = _silu(_B_ref(xn, B_w1, B_b1, B_w2, B_b2))
    return x + s * g
```

```python
NAME = "recurrent_scan__compressed_kv_cla__dense_activation_squared_relu__decode"
HEADER_COMMENT = """; Kernarg layout for this problem (112 bytes, ptrs only, base s[0:1]):
"""
KA = dict(x=0, ckv=8, wq=16, wuk=24, wuv=32, wo=40, bx=48, w1=56, b1=64, w2=72, b2=80, out=88, dbg=96, ws=104)
SZ = dict(x=1280, ckv=4096*512*2, wq=640*4096*2, wuk=512*4096*2, wuv=512*4096*2, wo=4096*640*2, bx=1280,
          w1=640*1728*2, b1=1728*2, w2=1728*640*2, b2=1280, out=1280, dbg=256, ws=268435456)

class Asm:
    def __init__(self):
        self.lines = []
        self.kernels = []
        self.nlab = 0
    def __call__(self, s=""):
        for l in s.split("\n"):
            l = l.rstrip()
            if l.strip() == "":
                continue
            t = l.strip()
            if t.endswith(":") or t.startswith(".") :
                self.lines.append(t)
            else:
                self.lines.append("    " + t)
    def label(self, base="L"):
        self.nlab += 1
        return f"{base}_{self.nlab}"
    def begin_kernel(self, label):
        self(f".globl {label}")
        self(".p2align 8")
        self(f".type {label},@function")
        self(f"{label}:")
    def descriptor(self, label, vgpr, sgpr=102, accum=None, extra=""):
        if accum is None:
            accum = max(4, (vgpr + 3) // 4 * 4)
            accum = min(accum, 256)
        return f""".p2align 6
.amdhsa_kernel {label}
  .amdhsa_next_free_vgpr {vgpr}
  .amdhsa_next_free_sgpr {sgpr}
  .amdhsa_accum_offset {accum}
  .amdhsa_group_segment_fixed_size 0
  .amdhsa_kernarg_size 112
  .amdhsa_user_sgpr_count 2
  .amdhsa_user_sgpr_kernarg_segment_ptr 1
  .amdhsa_system_sgpr_workgroup_id_x 1
{extra}.end_amdhsa_kernel
"""
    def finish(self, launches, descs, single=False):
        out = HEADER_COMMENT
        for (label, g, b, lds) in launches:
            if single:
                out += f"; @launch grid=({g[0]},{g[1]},{g[2]}) block=({b[0]},{b[1]},{b[2]}) lds={lds}\n"
            else:
                out += f"; @launch kernel={label} grid=({g[0]},{g[1]},{g[2]}) block=({b[0]},{b[1]},{b[2]}) lds={lds}\n"
        out += '.amdgcn_target "amdgcn-amd-amdhsa--gfx950"\n.text\n'
        out += "\n".join(self.lines) + "\n"
        out += '.section .rodata,"a"\n'
        for d in descs:
            out += d
        return out
    def srd(self, sreg, ptr_lo, nbytes):
        if ptr_lo != sreg:
            self(f"s_mov_b32 s{sreg}, s{ptr_lo}")
            self(f"s_and_b32 s{sreg+1}, s{ptr_lo+1}, 0xffff")
        else:
            self(f"s_and_b32 s{sreg+1}, s{sreg+1}, 0xffff")
        self(f"s_mov_b32 s{sreg+2}, {nbytes}")
        self(f"s_mov_b32 s{sreg+3}, 0x20000")
```

```python
import sys
from asmlib import *
NEMPTY = int(sys.argv[2]) if len(sys.argv) > 2 else 0
a = Asm()
WS_Q=0; WS_H=0x4000; WS_QA=0x8000; WS_SC=0x20000; WS_CC=0xA0000; WS_CTX=0xB0000; WS_XN=0xC0000
launches=[]; descs=[]
def load_ptr_srd(name, sreg):
    a(f"s_load_dwordx2 s[{sreg}:{sreg+1}], s[0:1], {KA[name]}")
def fin_srd(name, sreg):
    a.srd(sreg, sreg, SZ[name])
def rbf16(v, tmp=None):
    a(f"v_cvt_pk_bf16_f32 v{v}, v{v}, v{v}")
    a(f"v_lshlrev_b32 v{v}, 16, v{v}")
def wave_sum(v, t):
    for off in (0x041F,0x081F,0x101F,0x201F,0x401F):
        a(f"ds_swizzle_b32 v{t}, v{v} offset:{off}")
        a("s_waitcnt lgkmcnt(0)")
        a(f"v_add_f32 v{v}, v{v}, v{t}")
    a("s_nop 1")
    a(f"v_readlane_b32 s40, v{v}, 32")
    a(f"v_readlane_b32 s41, v{v}, 0")
    a("s_nop 3")
    a(f"v_mov_b32 v{v}, s40")
    a(f"v_add_f32 v{v}, s41, v{v}")

k="ln_kernel"; a.begin_kernel(k)
a("s_cmp_ge_u32 s2, 1\ns_cbranch_scc1 ln_done")
load_ptr_srd("x",4); load_ptr_srd("ws",8)
a("s_waitcnt lgkmcnt(0)")
fin_srd("x",4); fin_srd("ws",8)
a("v_lshlrev_b32 v1, 1, v0")
for i in range(10):
    a(f"buffer_load_ushort v{10+i}, v1, s[4:7], 0 offen offset:{i*128}")
a("s_waitcnt vmcnt(0)")
for i in range(10):
    a(f"v_lshlrev_b32 v{10+i}, 16, v{10+i}")
a("v_mov_b32 v2, 0")
for i in range(10):
    a(f"v_add_f32 v2, v2, v{10+i}")
wave_sum(2,3)
a("v_mul_f32 v2, 0x3acccccd, v2")
a("v_mov_b32 v4, 0")
for i in range(10):
    a(f"v_sub_f32 v5, v{10+i}, v2")
    a(f"v_fmac_f32 v4, v5, v5")
wave_sum(4,3)
a("v_mul_f32 v4, 0x3acccccd, v4")
rbf16(2); rbf16(4)
a("v_add_f32 v4, 0x3727c5ac, v4")
rbf16(4)
a("v_sqrt_f32 v4, v4\ns_nop 0")
rbf16(4)
a("v_rcp_f32 v6, v4\ns_nop 0")
a("v_lshlrev_b32 v1, 2, v0")
a(f"v_add_u32 v1, {WS_XN}, v1")
for i in range(10):
    a(f"v_sub_f32 v5, v{10+i}, v2")
    rbf16(5)
    a("v_mul_f32 v7, v5, v6")
    a("v_fma_f32 v8, -v7, v4, v5")
    a("v_fma_f32 v7, v8, v6, v7")
    rbf16(7)
    a(f"buffer_store_dword v7, v1, s[8:11], 0 offen offset:{i*256}")
    a("s_nop 1")
a("s_waitcnt vmcnt(0)")
a("ln_done:\ns_endpgm")
launches.append((k,(1,1,1),(64,1,1),0)); descs.append(a.descriptor(k,32))

def colgemv(kname, nthreads, K, wname, ld_bytes, vec_off_expr, epilogue, extra_ptrs=()):
    pass

k="qh_kernel"; a.begin_kernel(k)
a("s_cmp_ge_u32 s2, 23\ns_cbranch_scc1 qh_done")
load_ptr_srd("wq",4); load_ptr_srd("ws",8); load_ptr_srd("w1",12); load_ptr_srd("b1",16)
a("s_waitcnt lgkmcnt(0)")
fin_srd("wq",4); fin_srd("ws",8); fin_srd("w1",12); fin_srd("b1",16)
a("s_mov_b32 s20, 8192")
a("s_lshl_b32 s3, s2, 8")
a("s_cmp_lt_u32 s2, 16\ns_cbranch_scc1 qh_isq")
a("s_mov_b32 s4, s12\ns_mov_b32 s5, s13\ns_mov_b32 s6, s14\ns_mov_b32 s20, 3456\ns_sub_u32 s3, s3, 4096")
a("qh_isq:")
a("v_add_u32 v1, s3, v0")
a("v_lshlrev_b32 v2, 1, v1")
a("v_mov_b32 v3, 0")
a(f"v_mov_b32 v6, {WS_XN}")
a("s_mov_b32 s21, 0\ns_mov_b32 s22, 0")
a("qh_loop:")
for j in range(8):
    a(f"buffer_load_ushort v{10+j}, v2, s[4:7], s22 offen")
    a(f"buffer_load_dword v{20+j}, v6, s[8:11], 0 offen offset:{4*j}")
    a("s_add_u32 s22, s22, s20")
a("v_add_u32 v6, 32, v6")
a("s_waitcnt vmcnt(0)")
for j in range(8):
    a(f"v_lshlrev_b32 v{10+j}, 16, v{10+j}")
    a(f"v_fmac_f32 v3, v{10+j}, v{20+j}")
a("s_add_u32 s21, s21, 8\ns_cmp_lt_u32 s21, 640\ns_cbranch_scc1 qh_loop")
rbf16(3)
a("v_lshlrev_b32 v4, 2, v1")
a("s_cmp_lt_u32 s2, 16\ns_cbranch_scc1 qh_store")
a("buffer_load_ushort v10, v2, s[16:19], 0 offen\ns_waitcnt vmcnt(0)\nv_lshlrev_b32 v10, 16, v10\nv_add_f32 v3, v3, v10")
rbf16(3)
a("v_max_f32 v3, 0, v3\nv_mul_f32 v3, v3, v3")
rbf16(3)
a(f"v_add_u32 v4, {WS_H}, v4")
a("v_cmp_gt_u32 vcc, 1728, v1\ns_and_saveexec_b64 s[24:25], vcc\ns_cbranch_execz qh_done")
a("qh_store:")
a("buffer_store_dword v3, v4, s[8:11], 0 offen\ns_waitcnt vmcnt(0)")
a("qh_done:\ns_endpgm")
launches.append((k,(23,1,1),(256,1,1),0)); descs.append(a.descriptor(k,32))

k="qa_kernel"; a.begin_kernel(k)
a("s_cmp_ge_u32 s2, 64\ns_cbranch_scc1 qa_done")
load_ptr_srd("wuk",4); load_ptr_srd("ws",8)
a("s_waitcnt lgkmcnt(0)")
fin_srd("wuk",4); fin_srd("ws",8)
a("s_lshl_b32 s3, s2, 8\nv_add_u32 v1, s3, v0")
a("v_and_b32 v2, 511, v1\nv_lshrrev_b32 v3, 9, v1")
a("v_lshlrev_b32 v4, 13, v2\nv_lshlrev_b32 v5, 8, v3\nv_add_u32 v4, v4, v5")
a("v_lshlrev_b32 v5, 9, v3")
a("v_mov_b32 v6, 0\ns_mov_b32 s21, 0")
a("qa_loop:")
a("buffer_load_dwordx4 v[12:15], v4, s[4:7], 0 offen")
a("buffer_load_dwordx4 v[16:19], v5, s[8:11], 0 offen")
a("buffer_load_dwordx4 v[20:23], v5, s[8:11], 0 offen offset:16")
a("v_add_u32 v4, 16, v4\nv_add_u32 v5, 32, v5\ns_waitcnt vmcnt(0)")
for j in range(4):
    a(f"v_lshlrev_b32 v7, 16, v{12+j}\nv_fmac_f32 v6, v7, v{16+2*j}")
    a(f"v_and_b32 v7, 0xffff0000, v{12+j}\nv_fmac_f32 v6, v7, v{17+2*j}")
a("s_add_u32 s21, s21, 8\ns_cmp_lt_u32 s21, 128\ns_cbranch_scc1 qa_loop")
a(f"v_lshlrev_b32 v1, 2, v1\nv_add_u32 v1, {WS_QA}, v1")
a("buffer_store_dword v6, v1, s[8:11], 0 offen\ns_waitcnt vmcnt(0)")
a("qa_done:\ns_endpgm")
launches.append((k,(64,1,1),(256,1,1),0)); descs.append(a.descriptor(k,32))

k="sc_kernel"; a.begin_kernel(k)
a("s_cmp_ge_u32 s2, 512\ns_cbranch_scc1 sc_done")
load_ptr_srd("ckv",4); load_ptr_srd("ws",8)
a("s_waitcnt lgkmcnt(0)")
fin_srd("ckv",4); fin_srd("ws",8)
a("s_lshl_b32 s3, s2, 8\nv_add_u32 v1, s3, v0")
a("v_and_b32 v2, 4095, v1\nv_lshrrev_b32 v3, 12, v1")
a("v_lshlrev_b32 v4, 10, v2")
a(f"v_lshlrev_b32 v5, 11, v3\nv_add_u32 v5, {WS_QA}, v5")
a("v_mov_b32 v6, 0\ns_mov_b32 s21, 0")
a("sc_loop:")
a("buffer_load_dwordx4 v[12:15], v4, s[4:7], 0 offen")
a("buffer_load_dwordx4 v[16:19], v5, s[8:11], 0 offen")
a("buffer_load_dwordx4 v[20:23], v5, s[8:11], 0 offen offset:16")
a("v_add_u32 v4, 16, v4\nv_add_u32 v5, 32, v5\ns_waitcnt vmcnt(0)")
for j in range(4):
    a(f"v_lshlrev_b32 v7, 16, v{12+j}\nv_fmac_f32 v6, v7, v{16+2*j}")
    a(f"v_and_b32 v7, 0xffff0000, v{12+j}\nv_fmac_f32 v6, v7, v{17+2*j}")
a("s_add_u32 s21, s21, 8\ns_cmp_lt_u32 s21, 512\ns_cbranch_scc1 sc_loop")
a("v_mul_f32 v6, 0x3db504f3, v6")
a(f"v_lshlrev_b32 v1, 2, v1\nv_add_u32 v1, {WS_SC}, v1")
a("buffer_store_dword v6, v1, s[8:11], 0 offen\ns_waitcnt vmcnt(0)")
a("sc_done:\ns_endpgm")
launches.append((k,(512,1,1),(256,1,1),0)); descs.append(a.descriptor(k,32))

k="cc_kernel"; a.begin_kernel(k)
a("s_cmp_ge_u32 s2, 64\ns_cbranch_scc1 cc_done")
load_ptr_srd("ckv",4); load_ptr_srd("ws",8)
a("s_waitcnt lgkmcnt(0)")
fin_srd("ckv",4); fin_srd("ws",8)
a("s_lshl_b32 s3, s2, 8\nv_add_u32 v1, s3, v0")
a("v_and_b32 v2, 511, v1\nv_lshrrev_b32 v3, 9, v1")
a(f"v_lshlrev_b32 v5, 14, v3\nv_add_u32 v5, {WS_SC}, v5")
a("v_mov_b32 v8, 0xff800000\ns_mov_b32 s21, 0")
a("cc_loop1:")
a("buffer_load_dwordx4 v[16:19], v5, s[8:11], s21 offen")
a("buffer_load_dwordx4 v[20:23], v5, s[8:11], s21 offen offset:16")
a("s_waitcnt vmcnt(0)")
for j in range(8):
    a(f"v_max_f32 v8, v8, v{16+j}")
a("s_add_u32 s21, s21, 32\ns_cmp_lt_u32 s21, 16384\ns_cbranch_scc1 cc_loop1")
a("v_lshlrev_b32 v4, 1, v2\nv_mov_b32 v6, 0\nv_mov_b32 v9, 0\ns_mov_b32 s21, 0\ns_mov_b32 s22, 0")
a("cc_loop2:")
a("buffer_load_dwordx4 v[16:19], v5, s[8:11], s21 offen")
a("buffer_load_dwordx4 v[20:23], v5, s[8:11], s21 offen offset:16")
for j in range(8):
    a(f"buffer_load_ushort v{24+j}, v4, s[4:7], s22 offen")
    a("s_add_u32 s22, s22, 1024")
a("s_waitcnt vmcnt(0)")
for j in range(8):
    a(f"v_sub_f32 v7, v{16+j}, v8\nv_mul_f32 v7, 0x3fb8aa3b, v7\nv_exp_f32 v7, v7\nv_lshlrev_b32 v{24+j}, 16, v{24+j}")
    a(f"v_add_f32 v9, v9, v7\nv_fmac_f32 v6, v7, v{24+j}")
a("s_add_u32 s21, s21, 32\ns_cmp_lt_u32 s21, 16384\ns_cbranch_scc1 cc_loop2")
a("v_rcp_f32 v9, v9\ns_nop 0\nv_mul_f32 v6, v6, v9")
a(f"v_lshlrev_b32 v1, 2, v1\nv_add_u32 v1, {WS_CC}, v1")
a("buffer_store_dword v6, v1, s[8:11], 0 offen\ns_waitcnt vmcnt(0)")
a("cc_done:\ns_endpgm")
launches.append((k,(64,1,1),(256,1,1),0)); descs.append(a.descriptor(k,40))

k="ctx_kernel"; a.begin_kernel(k)
a("s_cmp_ge_u32 s2, 16\ns_cbranch_scc1 ctx_done")
load_ptr_srd("wuv",4); load_ptr_srd("ws",8)
a("s_waitcnt lgkmcnt(0)")
fin_srd("wuv",4); fin_srd("ws",8)
a("s_lshl_b32 s3, s2, 8\nv_add_u32 v1, s3, v0")
a("v_lshrrev_b32 v3, 7, v1")
a(f"v_lshlrev_b32 v5, 11, v3\nv_add_u32 v5, {WS_CC}, v5")
a("v_lshlrev_b32 v4, 1, v1\nv_mov_b32 v6, 0\ns_mov_b32 s21, 0\ns_mov_b32 s22, 0")
a("ctx_loop:")
a("buffer_load_dwordx4 v[16:19], v5, s[8:11], s21 offen")
a("buffer_load_dwordx4 v[20:23], v5, s[8:11], s21 offen offset:16")
for j in range(8):
    a(f"buffer_load_ushort v{24+j}, v4, s[4:7], s22 offen")
    a("s_add_u32 s22, s22, 8192")
a("s_waitcnt vmcnt(0)")
for j in range(8):
    a(f"v_lshlrev_b32 v{24+j}, 16, v{24+j}\nv_fmac_f32 v6, v{16+j}, v{24+j}")
a("s_add_u32 s21, s21, 32\ns_cmp_lt_u32 s21, 2048\ns_cbranch_scc1 ctx_loop")
rbf16(6)
a(f"v_lshlrev_b32 v1, 2, v1\nv_add_u32 v1, {WS_CTX}, v1")
a("buffer_store_dword v6, v1, s[8:11], 0 offen\ns_waitcnt vmcnt(0)")
a("ctx_done:\ns_endpgm")
launches.append((k,(16,1,1),(256,1,1),0)); descs.append(a.descriptor(k,40))

k="fin_kernel"; a.begin_kernel(k)
a("s_cmp_ge_u32 s2, 10\ns_cbranch_scc1 fin_done")
load_ptr_srd("wo",4); load_ptr_srd("ws",8); load_ptr_srd("w2",12); load_ptr_srd("b2",16); load_ptr_srd("x",24); load_ptr_srd("out",28)
a("s_waitcnt lgkmcnt(0)")
fin_srd("wo",4); fin_srd("ws",8); fin_srd("w2",12); fin_srd("b2",16); fin_srd("x",24); fin_srd("out",28)
a("s_lshl_b32 s3, s2, 6\nv_add_u32 v1, s3, v0\nv_lshlrev_b32 v4, 1, v1")
def fin_loop(lbl, srd, vec_off, K, acc):
    a(f"v_mov_b32 v5, {vec_off}\nv_mov_b32 v{acc}, 0\ns_mov_b32 s21, 0\ns_mov_b32 s22, 0")
    a(f"{lbl}:")
    a("buffer_load_dwordx4 v[16:19], v5, s[8:11], s21 offen")
    a("buffer_load_dwordx4 v[20:23], v5, s[8:11], s21 offen offset:16")
    for j in range(8):
        a(f"buffer_load_ushort v{24+j}, v4, s[{srd}:{srd+3}], s22 offen")
        a("s_add_u32 s22, s22, 1280")
    a("s_waitcnt vmcnt(0)")
    for j in range(8):
        a(f"v_lshlrev_b32 v{24+j}, 16, v{24+j}\nv_fmac_f32 v{acc}, v{16+j}, v{24+j}")
    a(f"s_add_u32 s21, s21, 32\ns_cmp_lt_u32 s21, {K*4}\ns_cbranch_scc1 {lbl}")
fin_loop("fin_l1", 4, WS_CTX, 4096, 6)
fin_loop("fin_l2", 12, WS_H, 1728, 7)
a("buffer_load_ushort v10, v4, s[16:19], 0 offen\nbuffer_load_ushort v11, v4, s[24:27], 0 offen\ns_waitcnt vmcnt(0)")
a("v_lshlrev_b32 v10, 16, v10\nv_lshlrev_b32 v11, 16, v11")
rbf16(6); rbf16(7)
a("v_add_f32 v7, v7, v10"); rbf16(7)
a("v_mul_f32 v8, 0xbfb8aa3b, v7\nv_exp_f32 v8, v8\ns_nop 0\nv_add_f32 v8, 1.0, v8\nv_rcp_f32 v8, v8\ns_nop 0\nv_mul_f32 v7, v7, v8")
rbf16(7)
a("v_mul_f32 v6, v6, v7"); rbf16(6)
a("v_add_f32 v6, v6, v11")
a("v_cvt_pk_bf16_f32 v6, v6, v6")
a("buffer_store_short v6, v4, s[28:31], 0 offen\ns_waitcnt vmcnt(0)")
a("fin_done:\ns_endpgm")
launches.append((k,(10,1,1),(64,1,1),0)); descs.append(a.descriptor(k,40))

if NEMPTY:
    k="empty_kernel"; a.begin_kernel(k); a("s_endpgm")
    descs.append(a.descriptor(k,8))
    for i in range(NEMPTY):
        launches.append((k,(256,1,1),(256,1,1),0))
open(sys.argv[1],"w").write(a.finish(launches, descs))
```
